```python
import torch

def _softmax(x, axis=-1):
    return torch.softmax(x, dim=axis)
def _gelu(x):
    return torch.nn.functional.gelu(x, approximate="tanh")
def _silu(x):
    return torch.nn.functional.silu(x)
def _sigmoid(x):
    return torch.sigmoid(x)
def _layernorm(x, axis=-1, eps=1e-5):
    m = x.mean(dim=axis, keepdim=True)
    v = x.var(dim=axis, keepdim=True, unbiased=False)
    return (x - m) / torch.sqrt(v + eps)
def _scatter_add(tgt, idx, src, axis=0):
    return tgt.clone().index_add_(axis, idx, src)
def _segment_sum(src, seg, n):
    out = torch.zeros((n,) + src.shape[1:], dtype=src.dtype)
    return out.index_add_(0, seg, src)
def _pad(x, pw):
    flat = tuple(v for pair in reversed(pw) for v in pair)
    return torch.nn.functional.pad(x, flat)

kernel_name = 'standalone__sliding_block_cached__sampling'

def setup_inputs():

    _w = (lambda a: (lambda t: t.to(torch.bfloat16) if t.is_floating_point() else t)(torch.as_tensor(a)))
    B, Sq, D = 32, 1, 512
    Hq, Hkv, Sk, Dh = 32, 8, 2048, 128
    assert Hq % Hkv == 0, (Hq, Hkv)
    return {
        "x": _w((lambda *s: torch.randn(*s, dtype=torch.bfloat16) * 0.8)(B, Sq, D)),
        "k_cache": _w((lambda *s: torch.randn(*s, dtype=torch.bfloat16) * 0.8)(B, Hkv, Sk, Dh)),
        "v_cache": _w((lambda *s: torch.randn(*s, dtype=torch.bfloat16) * 0.05)(B, Hkv, Sk, Dh)),
        "wq": _w((lambda *s: torch.randn(*s, dtype=torch.bfloat16) * 0.8)(D, Hq * Dh) * (D ** -0.5)),
        "wo": _w((lambda *s: torch.randn(*s, dtype=torch.bfloat16) * 0.05)(Hq * Dh, D) * ((Hq * Dh) ** -0.5)),
    }

def reference(x, k_cache, v_cache, wq, wo):
    B, Sq, D = x.shape
    Hq, Dh = 32, 128
    Hkv, Sk = k_cache.shape[1], k_cache.shape[2]
    W = min(4096, max(256, Sk // 4))
    rep = Hq // Hkv
    q = (lambda x, *d: x.permute(*d))((x @ wq).reshape(B, Sq, Hq, Dh), 0, 2, 1, 3)
    k = (lambda x, n, axis: torch.repeat_interleave(x, n, dim=axis))(k_cache[:, :, Sk - W:, :], rep, axis=1)
    v = (lambda x, n, axis: torch.repeat_interleave(x, n, dim=axis))(v_cache[:, :, Sk - W:, :], rep, axis=1)
    scores = torch.einsum("bhqd,bhkd->bhqk", q, k) * (Dh ** -0.5)
    p = _softmax(scores, axis=-1)
    o = torch.einsum("bhqk,bhkd->bhqd", p, v)
    return (lambda x, *d: x.permute(*d))(o, 0, 2, 1, 3).reshape(B, Sq, Hq * Dh) @ wo
```

```python
import sys, math, struct
NAME = "standalone__sliding_block_cached__sampling_kernel"

def f2u(x):
    return struct.unpack("<I", struct.pack("<f", x))[0]

QP_OFF = 0x100000
O_OFF  = 0x400000
OP_OFF = 0x500000
WS_SIZE = 0x800000
STAMP_OFF = 0x10000000
WB   = 131072
QL   = 147456
STM  = QL + 1024
STL  = STM + 128
FAC  = STL + 128
FLAGQ = FAC + 128
CNTS = FLAGQ + 4
LDS_TOTAL = 163840

class Gen:
    def __init__(self, stamps=False, kvpol="nt", wpol="nt", spin=200000):
        self.L = []
        self.stamps = stamps
        self.kvpol = kvpol
        self.wpol = wpol
        self.spin = spin
    def A(self, s):
        self.L.append(s)
    def stamp(self, idx):
        if self.stamps:
            self.A(f"s_memrealtime s[{64+2*idx}:{65+2*idx}]")
    def stamp_flush(self, lo, n, slot0):
        if not self.stamps: return
        A = self.A
        A("s_waitcnt lgkmcnt(0)")
        A(f"s_add_u32 s60, s18, {STAMP_OFF}"); A("s_addc_u32 s61, s19, 0")
        A("s_lshl_b32 s62, s2, 8")
        A("s_mov_b64 exec, 1")
        A("v_mov_b32 v0, s62")
        for i in range(n):
            A(f"v_mov_b32 v2, s{64+2*(lo+i)}"); A(f"v_mov_b32 v3, s{65+2*(lo+i)}")
            A(f"global_store_dwordx2 v0, v[2:3], s[60:61] offset:{(slot0+i)*8}")
            A("s_nop 1")
        A("s_mov_b64 exec, -1")

    def srd(self, d, lo, hi, size):
        A = self.A
        A(f"s_mov_b32 s{d}, s{lo}"); A(f"s_and_b32 s{d+1}, s{hi}, 0xffff"); A(f"s_mov_b32 s{d+2}, {size}"); A(f"s_mov_b32 s{d+3}, 0x20000")

    def build(self):
        A = self.A
        kv = self.kvpol; wp = self.wpol
        self.stamp(0)
        A("s_cmp_ge_u32 s2, 256")
        A("s_cbranch_scc1 L_end")
        A("s_load_dwordx16 s[4:19], s[0:1], 0")
        A("v_lshrrev_b32 v1, 6, v0")
        A("v_and_b32 v0, 63, v0")
        A("v_readfirstlane_b32 s3, v1")
        A("v_lshrrev_b32 v1, 4, v0")
        A("v_and_b32 v2, 15, v0")
        A("s_and_b32 s21, s2, 31")
        A("s_lshr_b32 s22, s2, 5")
        A("s_and_b32 s52, s2, 7")
        A("s_lshr_b32 s53, s2, 3"); A("s_and_b32 s54, s53, 7")
        A("s_lshr_b32 s53, s53, 3")
        A("s_cmp_eq_u32 s3, 8")
        A("s_cbranch_scc1 L_helper")
        self.attention()
        A("L_helper:")
        self.helper()
        A("L_end:")
        A("s_endpgm")

    def epoch_tag(self):
        A = self.A
        A("s_mul_i32 s56, s20, 0x9E3779B1")
        A("s_add_u32 s56, s56, 0x7F4A7C15")
        A("s_mul_i32 s57, s56, 0x85EBCA6B")
        A("s_xor_b32 s57, s57, 0x5BD1E995")

    def attention(self):
        A = self.A; kv = self.kvpol
        A("s_lshl_b32 s23, s21, 3"); A("s_add_u32 s23, s23, s22")
        A("s_lshr_b32 s59, s23, 13"); A("s_lshl_b32 s58, s23, 19")
        A("s_add_u32 s58, s58, 393216")
        A("v_lshlrev_b32 v3, 2, v1")
        A("v_xor_b32 v3, v3, v2")
        A("v_lshlrev_b32 v3, 4, v3")
        A("v_lshl_add_u32 v4, v1, 8, v3")
        A("v_xor_b32 v5, 16, v4"); A("v_xor_b32 v6, 32, v4"); A("v_xor_b32 v7, 48, v4")
        A("v_lshlrev_b32 v8, 4, v0")
        A("s_lshl_b32 s55, s3, 14")
        A("s_mov_b32 m0, s55")
        A("s_waitcnt lgkmcnt(0)")
        A("s_add_u32 s24, s6, s58"); A("s_addc_u32 s25, s7, s59"); A("s_and_b32 s25, s25, 0xffff"); A("s_mov_b32 s26, 131072"); A("s_mov_b32 s27, 0x20000")
        for tt in range(4):
            A(f"buffer_load_dwordx4 v{4+tt}, s[24:27], m0 offen offset:{tt*1024} {kv} lds")
        A("s_load_dword s20, s[18:19], 0")
        A("s_add_u32 s28, s8, s58"); A("s_addc_u32 s29, s9, s59"); A("s_and_b32 s29, s29, 0xffff"); A("s_mov_b32 s30, 131072"); A("s_mov_b32 s31, 0x20000")
        self.srd(44, 18, 19, WS_SIZE)
        A("s_barrier")
        for T in range(1, 4):
            A(f"s_add_u32 m0, s55, {T*4096}")
            A("s_nop 0")
            for tt in range(4):
                A(f"buffer_load_dwordx4 v{4+tt}, s[24:27], m0 offen offset:{tt*1024} {kv} lds")
        VB = 96
        for T in range(4):
            A(f"s_add_u32 s23, s55, {T*4096}")
            for r in range(4):
                t = 4*T + r
                A(f"buffer_load_dwordx4 v[{VB+4*t}:{VB+4*t+3}], v8, s[28:31], s23 offen offset:{r*1024} {kv}")
        self.stamp(1)
        A("v_and_b32 v9, 3, v2"); A("v_lshlrev_b32 v9, 2, v9"); A("v_lshrrev_b32 v3, 2, v2"); A("v_add_u32 v9, v9, v3")
        A("v_xor_b32 v10, v1, v2"); A("v_lshlrev_b32 v10, 4, v10")
        A("v_lshl_add_u32 v10, v9, 8, v10")
        A("v_add_u32 v10, s55, v10")
        A("v_xor_b32 v11, 64, v10"); A("v_xor_b32 v12, 0x80, v10"); A("v_xor_b32 v13, 0xc0, v10")
        A("v_lshlrev_b32 v14, 8, v3"); A("v_lshl_add_u32 v14, v1, 4, v14"); A(f"v_add_u32 v14, {QL}, v14")
        A("s_lshl_b32 s23, s3, 2"); A(f"s_add_u32 s23, s23, {STM}")
        A("v_lshlrev_b32 v15, 5, v3"); A("v_add_u32 v15, s23, v15")
        A("v_and_b32 v9, 3, v2")
        A("v_mov_b32 v16, 0"); A("v_mov_b32 v17, 0")
        A("v_mov_b32 v18, 0xffff"); A("v_mov_b32 v19, 0xffff0000")
        A("v_cmp_eq_u32 vcc, 0, v9"); A("s_nop 1"); A("v_cndmask_b32 v16, v16, v18, vcc")
        A("v_cmp_eq_u32 vcc, 1, v9"); A("s_nop 1"); A("v_cndmask_b32 v16, v16, v19, vcc")
        A("v_cmp_eq_u32 vcc, 2, v9"); A("s_nop 1"); A("v_cndmask_b32 v17, v17, v18, vcc")
        A("v_cmp_eq_u32 vcc, 3, v9"); A("s_nop 1"); A("v_cndmask_b32 v17, v17, v19, vcc")
        A(f"v_mov_b32 v18, {FLAGQ}")
        A("s_waitcnt lgkmcnt(0)")
        self.epoch_tag()
        A(f"s_mov_b32 s23, {self.spin}")
        A("L_qspin:")
        A("ds_read_b32 v19, v18")
        A("s_waitcnt lgkmcnt(0)")
        A("v_readfirstlane_b32 s33, v19")
        A("s_cmp_lg_u32 s33, 0")
        A("s_cbranch_scc1 L_qok")
        A("s_sleep 2")
        A("s_sub_u32 s23, s23, 1")
        A("s_cmp_lg_u32 s23, 0")
        A("s_cbranch_scc1 L_qspin")
        A("L_qok:")
        self.stamp(2)
        QB = 20
        for s in range(4):
            A(f"ds_read_b128 v[{QB+4*s}:{QB+4*s+3}], v14 offset:{64*s}")
        A("s_waitcnt vmcnt(16)")
        self.stamp(3)
        KB = 36
        SB = 68
        def kread(T):
            for s in range(4):
                b = KB + 16*(T & 1) + 4*s
                A(f"ds_read_b128 v[{b}:{b+3}], v{10+s} offset:{T*4096}")
        if self.stamps: A("s_waitcnt lgkmcnt(0)")
        kread(0); kread(1)
        for T in range(4):
            A(f"s_waitcnt lgkmcnt({4 if T < 3 else 0})")
            for s in range(4):
                b = KB + 16*(T & 1) + 4*s
                c = "0" if s == 0 else f"v[{SB+4*T}:{SB+4*T+3}]"
                A(f"v_mfma_f32_16x16x32_bf16 v[{SB+4*T}:{SB+4*T+3}], v[{b}:{b+3}], v[{QB+4*s}:{QB+4*s+3}], {c}")
            if T + 2 < 4:
                kread(T + 2)
        A("s_nop 7")
        S = [f"v{SB+i}" for i in range(16)]
        A(f"v_max3_f32 v84, {S[0]}, {S[1]}, {S[2]}")
        for i in range(3, 15, 2):
            A(f"v_max3_f32 v84, v84, {S[i]}, {S[i+1]}")
        A(f"v_max_f32 v84, v84, {S[15]}")
        for op in ("v_permlane32_swap_b32", "v_permlane16_swap_b32"):
            A("v_mov_b32 v85, v84"); A("s_nop 1")
            A(f"{op} v84, v85"); A("s_nop 1")
            A("v_max_f32 v84, v84, v85")
        c = math.log2(math.e) / math.sqrt(128.0)
        A(f"s_mov_b32 s34, {f2u(c):#x}")
        A("v_mul_f32 v84, s34, v84")
        for i in range(16):
            A(f"v_fma_f32 {S[i]}, {S[i]}, s34, -v84")
        for i in range(16):
            A(f"v_exp_f32 {S[i]}, {S[i]}")
        A("s_nop 0")
        A(f"v_add_f32 v86, {S[0]}, {S[1]}"); A(f"v_add_f32 v87, {S[2]}, {S[3]}")
        for i in range(4, 16, 2):
            A(f"v_add_f32 v86, v86, {S[i]}"); A(f"v_add_f32 v87, v87, {S[i+1]}")
        A("v_add_f32 v86, v86, v87")
        for op in ("v_permlane32_swap_b32", "v_permlane16_swap_b32"):
            A("v_mov_b32 v85, v86"); A("s_nop 1")
            A(f"{op} v86, v85"); A("s_nop 1")
            A("v_add_f32 v86, v86, v85")
        A("ds_write_b32 v15, v84")
        A(f"ds_write_b32 v15, v86 offset:{STL-STM}")
        XB = 36
        for i in range(16):
            A(f"v_cvt_pk_bf16_f32 {S[i]}, {S[i]}, {S[i]}")
        for i in range(16):
            A(f"v_and_b32 v{XB+2*i}, {S[i]}, v16"); A(f"v_and_b32 v{XB+2*i+1}, {S[i]}, v17")
        A("s_waitcnt lgkmcnt(0)")
        A("s_mov_b64 exec, 1")
        A("v_mov_b32 v19, 1")
        A(f"ds_add_u32 v18, v19 offset:{CNTS-FLAGQ}")
        A("s_mov_b64 exec, -1")
        self.stamp(4)
        AB = [68, 72, 76, 80, 20, 24, 28, 32]
        A("s_cmp_ge_u32 s3, 4")
        A("s_cbranch_scc1 L_noa")
        A("v_lshrrev_b32 v9, 2, v2"); A("v_lshl_add_u32 v9, v1, 3, v9"); A("v_lshlrev_b32 v9, 7, v9")
        A("v_and_b32 v19, 3, v2"); A("v_lshl_add_u32 v9, v19, 3, v9")
        A("s_lshr_b32 s23, s3, 1"); A("s_lshl_b32 s23, s23, 6"); A(f"s_add_u32 s23, s23, {WB}")
        A("v_add_u32 v9, s23, v9")
        for nt in range(2):
            for s in range(4):
                b = AB[4*nt + s]
                for hh in range(2):
                    A(f"ds_read_b64_tr_b16 v[{b+2*hh}:{b+2*hh+1}], v9 offset:{s*4096 + hh*512 + nt*32}")
        A("L_noa:")
        for t in range(16):
            A(f"s_waitcnt vmcnt({15-t})")
            c1 = "0" if t == 0 else "v[88:91]"
            c2 = "0" if t == 0 else "v[92:95]"
            A(f"v_mfma_f32_16x16x16_bf16 v[88:91], v[{XB+2*t}:{XB+2*t+1}], v[{VB+4*t}:{VB+4*t+1}], {c1}")
            A(f"v_mfma_f32_16x16x16_bf16 v[92:95], v[{XB+2*t}:{XB+2*t+1}], v[{VB+4*t+2}:{VB+4*t+3}], {c2}")
        self.stamp(5)
        A("v_add_u32 v9, s55, v8")
        A("s_nop 6")
        A("ds_write_b128 v9, v[88:91]")
        A("ds_write_b128 v9, v[92:95] offset:1024")
        A("s_waitcnt lgkmcnt(0)")
        A("s_barrier")
        self.stamp(6)
        A("s_cmp_lt_u32 s3, 4")
        A("s_cbranch_scc1 L_oproj")
        A("s_cmp_ge_u32 s3, 6")
        A("s_cbranch_scc1 L_end")
        A("s_and_b32 s23, s3, 1")
        A("s_lshl_b32 s33, s23, 10")
        A("v_add_u32 v9, s33, v8")
        A("v_add_u32 v10, 0x10000, v9")
        A("v_lshlrev_b32 v11, 5, v1"); A(f"v_add_u32 v11, {FAC}, v11")
        A("ds_read_b128 v[20:23], v11"); A("ds_read_b128 v[24:27], v11 offset:16")
        for w in range(8):
            A(f"ds_read_b128 v[{36+4*w}:{39+4*w}], v{9 if w < 4 else 10} offset:{(w&3)*16384}")
        A("v_lshlrev_b32 v12, 14, v1")
        A("v_lshrrev_b32 v13, 2, v2"); A("v_lshl_add_u32 v12, v13, 11, v12")
        A("v_and_b32 v13, 3, v2"); A("v_lshl_add_u32 v12, v13, 4, v12")
        A("s_lshl_b32 s35, s22, 16")
        A("s_lshr_b32 s36, s21, 4"); A("s_lshl_b32 s36, s36, 13"); A("s_add_u32 s35, s35, s36")
        A("s_and_b32 s36, s21, 15"); A("s_lshl_b32 s36, s36, 6"); A("s_add_u32 s35, s35, s36")
        A("s_add_u32 s35, s35, s33"); A(f"s_add_u32 s35, s35, {O_OFF}")
        A("v_mov_b32 v68, s56"); A("v_mov_b32 v69, s57"); A("v_mov_b32 v72, s56"); A("v_mov_b32 v73, s57")
        A("s_waitcnt lgkmcnt(7)")
        for e in range(4): A(f"v_mul_f32 v{84+e}, v20, v{36+e}")
        for w in range(1, 8):
            A(f"s_waitcnt lgkmcnt({7-w})")
            for e in range(4): A(f"v_fmac_f32 v{84+e}, v{20+w}, v{36+4*w+e}")
        A("v_cvt_pk_bf16_f32 v70, v84, v85"); A("v_cvt_pk_bf16_f32 v71, v86, v87")
        A("s_cmp_eq_u32 s23, 0")
        A("s_cbranch_scc0 L_storeL")
        A("buffer_store_dwordx4 v[68:71], v12, s[44:47], s35 offen sc1")
        self.stamp(7)
        self.stamp_flush(1, 7, 16)
        A("s_endpgm")
        A("L_storeL:")
        A("buffer_store_dwordx4 v[70:73], v12, s[44:47], s35 offen sc1")
        A("s_endpgm")
        A("L_oproj:")
        A("s_lshl_b32 s35, s52, 2"); A("s_add_u32 s35, s35, s53")
        A("s_and_b32 s36, s3, 1")
        A("s_lshl_b32 s37, s35, 14"); A("s_lshl_b32 s38, s36, 13"); A("s_add_u32 s37, s37, s38"); A(f"s_add_u32 s37, s37, {O_OFF}")
        A("s_add_u32 s38, s37, 4096")
        A("v_lshlrev_b32 v9, 6, v2"); A("v_lshl_add_u32 v9, v1, 4, v9")
        A("v_lshlrev_b32 v10, 16, v2"); A("v_lshl_add_u32 v10, v1, 4, v10")
        A("s_lshl_b32 s39, s36, 20"); A("s_lshl_b32 s40, s54, 13"); A("s_add_u32 s39, s39, s40")
        A("s_lshl_b32 s40, s35, 8"); A("s_add_u32 s39, s39, s40")
        A("s_lshr_b32 s40, s3, 1"); A("s_lshl_b32 s40, s40, 7"); A("s_add_u32 s39, s39, s40"); A(f"s_add_u32 s39, s39, {OP_OFF}")
        A(f"s_mov_b32 s23, {self.spin}")
        OB = 96
        A("L_ospin:")
        for s in range(4):
            for ul in range(2):
                b = OB + 8*s + 4*ul
                so = "s37" if s < 2 else "s38"
                A(f"buffer_load_dwordx4 v[{b}:{b+3}], v9, s[44:47], {so} offen offset:{(s&1)*2048 + ul*1024} sc1")
        A("s_waitcnt vmcnt(0)")
        for s in range(4):
            b = OB + 8*s
            A(f"v_cmpx_eq_u64 vcc, s[56:57], v[{b}:{b+1}]")
            A(f"v_cmpx_eq_u64 vcc, s[56:57], v[{b+6}:{b+7}]")
        A("s_cmp_eq_u64 exec, -1")
        A("s_mov_b64 exec, -1")
        A("s_cbranch_scc1 L_ook")
        A("s_sub_u32 s23, s23, 1")
        A("s_cmp_lg_u32 s23, 0")
        A("s_cbranch_scc1 L_ospin")
        A("L_ook:")
        self.stamp(7)
        A("s_nop 3")
        for s in range(4):
            b = OB + 8*s + 2
            for nt in range(2):
                a = AB[4*nt + s]
                d = 36 + 4*nt
                c = "0" if s == 0 else f"v[{d}:{d+3}]"
                A(f"v_mfma_f32_16x16x32_bf16 v[{d}:{d+3}], v[{a}:{a+3}], v[{b}:{b+3}], {c}")
        A("s_nop 7")
        for nt in range(2):
            d = 36 + 4*nt
            for e in range(4):
                A(f"v_mov_b32_sdwa v{d+e}, s56 dst_sel:BYTE_0 dst_unused:UNUSED_PRESERVE src0_sel:BYTE_{e}")
            A("s_nop 0")
            A(f"buffer_store_dwordx4 v[{d}:{d+3}], v10, s[44:47], s39 offen offset:{nt*64} sc1")
        self.stamp(8)
        if self.stamps:
            A("s_cmp_lg_u32 s3, 0")
            A("s_cbranch_scc1 L_end")
            self.stamp_flush(0, 9, 0)
        A("s_endpgm")

    def helper(self):
        A = self.A; wp = self.wpol
        A("s_setprio 3")
        A(f"v_mov_b32 v18, {FLAGQ}")
        A("v_mov_b32 v20, 0"); A("v_mov_b32 v21, 0")
        A("ds_write_b64 v18, v[20:21]")
        A("v_lshrrev_b32 v3, 3, v0"); A("v_and_b32 v4, 7, v0"); A("v_lshlrev_b32 v4, 4, v4")
        A("v_lshl_add_u32 v5, v3, 13, v4")
        A("v_lshl_add_u32 v6, v3, 10, v4")
        A("v_lshlrev_b32 v7, 10, v2"); A("v_lshl_add_u32 v7, v1, 4, v7")
        A("s_lshl_b32 s23, s52, 3"); A("s_add_u32 s23, s23, s54")
        A("s_lshl_b32 s24, s53, 20"); A("s_lshl_b32 s25, s23, 7"); A("s_add_u32 s24, s24, s25")
        A("s_lshl_b32 s26, s53, 8"); A("s_add_u32 s27, s26, 16384")
        A("s_waitcnt lgkmcnt(0)")
        self.srd(32, 10, 11, 4194304)
        self.srd(36, 4, 5, 32768)
        A("s_load_dword s20, s[18:19], 0")
        for t in range(16):
            A(f"s_mov_b32 m0, {WB + t*1024}")
            A(f"s_add_u32 s25, s24, {t*65536}")
            A(f"buffer_load_dwordx4 v5, s[32:35], s25 offen {wp} lds")
        XB = 24
        for bt in range(2):
            for s in range(4):
                b = XB + 16*bt + 4*s
                A(f"buffer_load_dwordx4 v[{b}:{b+3}], v7, s[36:39], s{26+bt} offen offset:{s*64}")
        A("s_barrier")
        self.srd(40, 12, 13, 4194304)
        self.srd(44, 18, 19, WS_SIZE)
        self.srd(48, 14, 15, 32768)
        A("v_lshrrev_b32 v9, 2, v2"); A("v_lshl_add_u32 v9, v1, 3, v9"); A("v_lshlrev_b32 v9, 7, v9")
        A("v_and_b32 v19, 3, v2"); A("v_lshl_add_u32 v9, v19, 3, v9")
        A(f"v_add_u32 v9, {WB}, v9")
        A("v_lshlrev_b32 v10, 16, v2"); A("v_lshl_add_u32 v10, v1, 4, v10")
        A("s_lshl_b32 s28, s52, 13"); A("s_lshl_b32 s29, s53, 11"); A("s_add_u32 s28, s28, s29")
        A("s_lshl_b32 s29, s54, 8"); A("s_add_u32 s28, s28, s29"); A(f"s_add_u32 s28, s28, {QP_OFF}")
        A("s_add_u32 s29, s28, 0x100000")
        A("v_lshlrev_b32 v8, 4, v0")
        A("s_waitcnt lgkmcnt(0)")
        self.epoch_tag()
        A("s_waitcnt vmcnt(0)")
        self.stamp(1)
        AB = 56
        for nt in range(4):
            for s in range(4):
                b = AB + 16*nt + 4*s
                for hh in range(2):
                    A(f"ds_read_b64_tr_b16 v[{b+2*hh}:{b+2*hh+1}], v9 offset:{s*4096 + hh*512 + nt*32}")
            if nt == 0 or nt == 2:
                pass
        DB = 120
        A("s_waitcnt lgkmcnt(0)")
        A("s_lshl_b32 s24, s52, 2"); A("s_add_u32 s24, s24, s53"); A("s_lshl_b32 s24, s24, 17")
        A("s_lshl_b32 s25, s54, 7"); A("s_add_u32 s24, s24, s25")
        for nt in range(4):
            for s in range(4):
                for bt in range(2):
                    a = AB + 16*nt + 4*s; b = XB + 16*bt + 4*s; d = DB + 8*nt + 4*bt
                    c = "0" if s == 0 else f"v[{d}:{d+3}]"
                    A(f"v_mfma_f32_16x16x32_bf16 v[{d}:{d+3}], v[{a}:{a+3}], v[{b}:{b+3}], {c}")
        A("s_nop 7")
        for nt in range(4):
            for bt in range(2):
                d = DB + 8*nt + 4*bt
                for e in range(4):
                    A(f"v_mov_b32_sdwa v{d+e}, s56 dst_sel:BYTE_0 dst_unused:UNUSED_PRESERVE src0_sel:BYTE_{e}")
                A("s_nop 0")
                A(f"buffer_store_dwordx4 v[{d}:{d+3}], v10, s[44:47], s{28+bt} offen offset:{nt*64} sc1")
        self.stamp(2)
        for t in range(16):
            A(f"s_mov_b32 m0, {WB + t*1024}")
            A(f"s_add_u32 s25, s24, {t*8192}")
            A(f"buffer_load_dwordx4 v6, s[40:43], s25 offen {wp} lds")
        A("s_lshl_b32 s28, s21, 16"); A("s_lshl_b32 s29, s22, 13"); A("s_add_u32 s28, s28, s29"); A(f"s_add_u32 s28, s28, {QP_OFF}")
        A("s_add_u32 s29, s28, 4096")
        PB = 24
        def poll(label, cnt_reg):
            A(f"s_mov_b32 s23, {self.spin}")
            A(f"{label}:")
            for t in range(8):
                A(f"buffer_load_dwordx4 v[{PB+4*t}:{PB+4*t+3}], v8, s[44:47], s{28 + (t>>2)} offen offset:{(t&3)*1024} sc1")
            A("s_waitcnt vmcnt(0)")
            for t in range(8):
                for e in range(4):
                    A(f"v_cmpx_eq_u32_sdwa vcc, v{PB+4*t+e}, s56 src0_sel:BYTE_0 src1_sel:BYTE_{e}")
            A("s_cmp_eq_u64 exec, -1")
            A("s_mov_b64 exec, -1")
            A(f"s_cbranch_scc1 {label}_ok")
            A("s_sub_u32 s23, s23, 1")
            A("s_cmp_lg_u32 s23, 0")
            A(f"s_cbranch_scc1 {label}")
            A(f"{label}_ok:")
        poll("L_qpoll", 23)
        self.stamp(3)
        for half in range(2):
            for e in range(4):
                r = [PB + 4*(2*kq + half) + e for kq in range(4)]
                A(f"v_add_f32 v{r[0]}, v{r[0]}, v{r[1]}"); A(f"v_add_f32 v{r[2]}, v{r[2]}, v{r[3]}"); A(f"v_add_f32 v{r[0]}, v{r[0]}, v{r[2]}")
        A("v_lshlrev_b32 v11, 3, v0"); A(f"v_add_u32 v11, {QL}, v11")
        for half in range(2):
            b = PB + 4*half
            A(f"v_cvt_pk_bf16_f32 v{60+2*half}, v{b}, v{b+1}"); A(f"v_cvt_pk_bf16_f32 v{61+2*half}, v{b+2}, v{b+3}")
            A(f"ds_write_b64 v11, v[{60+2*half}:{61+2*half}] offset:{half*512}")
        A("v_mov_b32 v19, 1")
        A("s_waitcnt lgkmcnt(0)")
        A("ds_write_b32 v18, v19")
        A(f"s_mov_b32 s23, {self.spin}")
        A("L_sspin:")
        A(f"ds_read_b32 v19, v18 offset:{CNTS-FLAGQ}")
        A("s_waitcnt lgkmcnt(0)")
        A("v_readfirstlane_b32 s33, v19")
        A("s_cmp_eq_u32 s33, 8")
        A("s_cbranch_scc1 L_sok")
        A("s_sleep 1")
        A("s_sub_u32 s23, s23, 1")
        A("s_cmp_lg_u32 s23, 0")
        A("s_cbranch_scc1 L_sspin")
        A("L_sok:")
        self.stamp(4)
        A("v_and_b32 v11, 31, v0"); A("v_lshlrev_b32 v11, 2, v11"); A(f"v_add_u32 v11, {STM}, v11")
        A("ds_read_b32 v20, v11"); A(f"ds_read_b32 v21, v11 offset:{STL-STM}")
        A("s_waitcnt lgkmcnt(0)")
        dpps = ["quad_perm:[1,0,3,2]", "quad_perm:[2,3,0,1]", "row_half_mirror"]
        A("v_mov_b32 v22, v20")
        for d in dpps:
            A("s_nop 1")
            A(f"v_max_f32_dpp v22, v22, v22 {d} row_mask:0xf bank_mask:0xf")
        A("v_sub_f32 v20, v20, v22")
        A("v_exp_f32 v20, v20")
        A("s_nop 0")
        A("v_mul_f32 v21, v20, v21")
        for d in dpps:
            A("s_nop 1")
            A(f"v_add_f32_dpp v21, v21, v21 {d} row_mask:0xf bank_mask:0xf")
        A("v_rcp_f32 v21, v21")
        A("s_nop 0")
        A("v_mul_f32 v20, v20, v21")
        A(f"ds_write_b32 v11, v20 offset:{FAC-STM}")
        A("s_lshl_b32 s28, s2, 13"); A(f"s_add_u32 s28, s28, {OP_OFF}"); A("s_add_u32 s29, s28, 4096")
        A("s_waitcnt lgkmcnt(0)")
        A("s_barrier")
        self.stamp(5)
        poll("L_ppoll", 23)
        self.stamp(6)
        for e in range(4):
            r = [PB + 4*t + e for t in range(8)]
            A(f"v_add_f32 v{r[0]}, v{r[0]}, v{r[1]}"); A(f"v_add_f32 v{r[2]}, v{r[2]}, v{r[3]}")
            A(f"v_add_f32 v{r[4]}, v{r[4]}, v{r[5]}"); A(f"v_add_f32 v{r[6]}, v{r[6]}, v{r[7]}")
        for e in range(4):
            r = [PB + 4*t + e for t in range(8)]
            A(f"v_add_f32 v{r[0]}, v{r[0]}, v{r[2]}"); A(f"v_add_f32 v{r[4]}, v{r[4]}, v{r[6]}")
        for e in range(4):
            A(f"v_add_f32 v{PB+e}, v{PB+e}, v{PB+16+e}")
        for op in ("v_permlane32_swap_b32", "v_permlane16_swap_b32"):
            for e in range(4): A(f"v_mov_b32 v{60+e}, v{PB+e}")
            A("s_nop 1")
            for e in range(4): A(f"{op} v{PB+e}, v{60+e}")
            A("s_nop 1")
            for e in range(4): A(f"v_add_f32 v{PB+e}, v{PB+e}, v{60+e}")
        A(f"v_cvt_pk_bf16_f32 v60, v{PB}, v{PB+1}"); A(f"v_cvt_pk_bf16_f32 v61, v{PB+2}, v{PB+3}")
        A("v_lshlrev_b32 v11, 3, v0")
        A("s_lshl_b32 s28, s2, 7")
        A("s_mov_b64 exec, 0xffff")
        A("buffer_store_dwordx2 v[60:61], v11, s[48:51], s28 offen")
        A("s_cmp_lg_u32 s2, 0")
        A("s_cbranch_scc1 L_noepoch")
        A("s_mov_b64 exec, 1")
        A("v_mov_b32 v62, s56"); A("v_mov_b32 v63, 0")
        A("buffer_store_dword v62, v63, s[44:47], 0 offen")
        A("L_noepoch:")
        A("s_mov_b64 exec, -1")
        self.stamp(7)
        self.stamp_flush(1, 7, 9)

    def text(self):
        self.build()
        hdr = open("standalone__sliding_block_cached__sampling.s.ref").read().split("; Override launch")[0] if False else ""
        body = "\n".join(("    " + x) if not x.endswith(":") else x for x in self.L)
        return f"""; Fused q-proj + sliding-window GQA decode attention + o-proj (generated by gen1.py)
; @launch grid=(256,1,1) block=(576,1,1) lds={LDS_TOTAL}
.amdgcn_target "amdgcn-amd-amdhsa--gfx950"
.text
.globl {NAME}
.p2align 8
.type {NAME},@function
{NAME}:
{body}
.section .rodata,"a"
.p2align 6
.amdhsa_kernel {NAME}
  .amdhsa_next_free_vgpr 160
  .amdhsa_next_free_sgpr 96
  .amdhsa_accum_offset 160
  .amdhsa_group_segment_fixed_size 0
  .amdhsa_kernarg_size 64
  .amdhsa_user_sgpr_count 2
  .amdhsa_user_sgpr_kernarg_segment_ptr 1
  .amdhsa_system_sgpr_workgroup_id_x 1
.end_amdhsa_kernel
"""

if __name__ == "__main__":
    open("k1.s", "w").write(Gen().text())
    open("k1_st.s", "w").write(Gen(stamps=True).text())
    open("k1_nont.s", "w").write(Gen(kvpol="", wpol="").text())
```

```python
import sys, math, struct
NAME = "standalone__sliding_block_cached__sampling_kernel"

def f2u(x):
    return struct.unpack("<I", struct.pack("<f", x))[0]

QP_OFF = 0x100000
O_OFF  = 0x400000
OP_OFF = 0x500000
WS_SIZE = 0x800000
STAMP_OFF = 0x10000000
WB   = 131072
QL   = 147456
STM  = QL + 1024
STL  = STM + 128
FAC  = STL + 128
FLAGQ = FAC + 128
CNTS = FLAGQ + 4
LDS_TOTAL = 163840

class Gen:
    def __init__(self, dbgstamps=None, stamps=False, kvpol="nt", wpol="nt", spin=200000):
        self.L = []
        self.stamps = stamps or (dbgstamps is not None)
        self.dbgstamps = dbgstamps
        self.kvpol = kvpol
        self.wpol = wpol
        self.spin = spin
    def A(self, s):
        self.L.append(s)
    def stamp(self, idx):
        if self.stamps:
            self.A(f"s_memrealtime s[{64+2*idx}:{65+2*idx}]")
    def stamp_flush(self, lo, n, slot0):
        if not self.stamps: return
        A = self.A
        A("s_waitcnt lgkmcnt(0)")
        if self.dbgstamps is not None:
            A("s_mov_b64 exec, 1")
            A("v_mov_b32 v0, 0")
            for i in range(n):
                slot = slot0 + i
                if slot == 0:
                    A(f"s_not_b32 s62, s{64+2*(lo+i)}"); A("v_mov_b32 v2, s62")
                    A("global_atomic_umax v0, v2, s[16:17]")
                if slot in self.dbgstamps:
                    A(f"v_mov_b32 v2, s{64+2*(lo+i)}")
                    A(f"global_atomic_umax v0, v2, s[16:17] offset:{4*(1+self.dbgstamps.index(slot))}")
            A("s_mov_b64 exec, -1")
            return
        A(f"s_add_u32 s60, s18, {STAMP_OFF}"); A("s_addc_u32 s61, s19, 0")
        A("s_lshl_b32 s62, s2, 8")
        A("s_mov_b64 exec, 1")
        A("v_mov_b32 v0, s62")
        for i in range(n):
            A(f"v_mov_b32 v2, s{64+2*(lo+i)}"); A(f"v_mov_b32 v3, s{65+2*(lo+i)}")
            A(f"global_store_dwordx2 v0, v[2:3], s[60:61] offset:{(slot0+i)*8}")
            A("s_nop 1")
        A("s_mov_b64 exec, -1")

    def srd(self, d, lo, hi, size):
        A = self.A
        A(f"s_mov_b32 s{d}, s{lo}"); A(f"s_and_b32 s{d+1}, s{hi}, 0xffff"); A(f"s_mov_b32 s{d+2}, {size}"); A(f"s_mov_b32 s{d+3}, 0x20000")

    def build(self):
        A = self.A
        kv = self.kvpol; wp = self.wpol
        self.stamp(0)
        A("s_cmp_ge_u32 s2, 256")
        A("s_cbranch_scc1 L_end")
        A("s_load_dwordx16 s[4:19], s[0:1], 0")
        A("v_lshrrev_b32 v1, 6, v0")
        A("v_and_b32 v0, 63, v0")
        A("v_readfirstlane_b32 s3, v1")
        A("v_lshrrev_b32 v1, 4, v0")
        A("v_and_b32 v2, 15, v0")
        A("s_and_b32 s21, s2, 31")
        A("s_lshr_b32 s22, s2, 5")
        A("s_and_b32 s52, s2, 7")
        A("s_lshr_b32 s53, s2, 3"); A("s_and_b32 s54, s53, 7")
        A("s_lshr_b32 s53, s53, 3")
        A("s_cmp_eq_u32 s3, 8")
        A("s_cbranch_scc1 L_helper")
        self.attention()
        A("L_helper:")
        self.helper()
        A("L_end:")
        A("s_endpgm")

    def epoch_tag(self):
        A = self.A
        A("s_mul_i32 s56, s20, 0x9E3779B1")
        A("s_add_u32 s56, s56, 0x7F4A7C15")
        A("s_mul_i32 s57, s56, 0x85EBCA6B")
        A("s_xor_b32 s57, s57, 0x5BD1E995")

    def attention(self):
        A = self.A; kv = self.kvpol
        A("s_lshl_b32 s23, s21, 3"); A("s_add_u32 s23, s23, s22")
        A("s_lshr_b32 s59, s23, 13"); A("s_lshl_b32 s58, s23, 19")
        A("s_add_u32 s58, s58, 393216")
        A("v_lshlrev_b32 v3, 2, v1")
        A("v_xor_b32 v3, v3, v2")
        A("v_lshlrev_b32 v3, 4, v3")
        A("v_lshl_add_u32 v4, v1, 8, v3")
        A("v_xor_b32 v5, 16, v4"); A("v_xor_b32 v6, 32, v4"); A("v_xor_b32 v7, 48, v4")
        A("v_lshlrev_b32 v8, 4, v0")
        A("s_lshl_b32 s55, s3, 14")
        A("s_mov_b32 m0, s55")
        A("s_waitcnt lgkmcnt(0)")
        A("s_add_u32 s24, s6, s58"); A("s_addc_u32 s25, s7, s59"); A("s_and_b32 s25, s25, 0xffff"); A("s_mov_b32 s26, 131072"); A("s_mov_b32 s27, 0x20000")
        for tt in range(4):
            A(f"buffer_load_dwordx4 v{4+tt}, s[24:27], m0 offen offset:{tt*1024} {kv} lds")
        A("s_load_dword s20, s[18:19], 0")
        A("s_add_u32 s28, s8, s58"); A("s_addc_u32 s29, s9, s59"); A("s_and_b32 s29, s29, 0xffff"); A("s_mov_b32 s30, 131072"); A("s_mov_b32 s31, 0x20000")
        self.srd(44, 18, 19, WS_SIZE)
        A("s_barrier")
        for T in range(1, 4):
            A(f"s_add_u32 m0, s55, {T*4096}")
            A("s_nop 0")
            for tt in range(4):
                A(f"buffer_load_dwordx4 v{4+tt}, s[24:27], m0 offen offset:{tt*1024} {kv} lds")
        VB = 96
        for T in range(4):
            A(f"s_add_u32 s23, s55, {T*4096}")
            for r in range(4):
                t = 4*T + r
                A(f"buffer_load_dwordx4 v[{VB+4*t}:{VB+4*t+3}], v8, s[28:31], s23 offen offset:{r*1024} {kv}")
        self.stamp(1)
        A("v_and_b32 v9, 3, v2"); A("v_lshlrev_b32 v9, 2, v9"); A("v_lshrrev_b32 v3, 2, v2"); A("v_add_u32 v9, v9, v3")
        A("v_xor_b32 v10, v1, v2"); A("v_lshlrev_b32 v10, 4, v10")
        A("v_lshl_add_u32 v10, v9, 8, v10")
        A("v_add_u32 v10, s55, v10")
        A("v_xor_b32 v11, 64, v10"); A("v_xor_b32 v12, 0x80, v10"); A("v_xor_b32 v13, 0xc0, v10")
        A("v_lshlrev_b32 v14, 8, v3"); A("v_lshl_add_u32 v14, v1, 4, v14"); A(f"v_add_u32 v14, {QL}, v14")
        A("s_lshl_b32 s23, s3, 2"); A(f"s_add_u32 s23, s23, {STM}")
        A("v_lshlrev_b32 v15, 5, v3"); A("v_add_u32 v15, s23, v15")
        A("v_and_b32 v9, 3, v2")
        A("v_mov_b32 v16, 0"); A("v_mov_b32 v17, 0")
        A("v_mov_b32 v18, 0xffff"); A("v_mov_b32 v19, 0xffff0000")
        A("v_cmp_eq_u32 vcc, 0, v9"); A("s_nop 1"); A("v_cndmask_b32 v16, v16, v18, vcc")
        A("v_cmp_eq_u32 vcc, 1, v9"); A("s_nop 1"); A("v_cndmask_b32 v16, v16, v19, vcc")
        A("v_cmp_eq_u32 vcc, 2, v9"); A("s_nop 1"); A("v_cndmask_b32 v17, v17, v18, vcc")
        A("v_cmp_eq_u32 vcc, 3, v9"); A("s_nop 1"); A("v_cndmask_b32 v17, v17, v19, vcc")
        A(f"v_mov_b32 v18, {FLAGQ}")
        A("s_waitcnt lgkmcnt(0)")
        self.epoch_tag()
        A(f"s_mov_b32 s23, {self.spin}")
        A("L_qspin:")
        A("ds_read_b32 v19, v18")
        A("s_waitcnt lgkmcnt(0)")
        A("v_readfirstlane_b32 s33, v19")
        A("s_cmp_lg_u32 s33, 0")
        A("s_cbranch_scc1 L_qok")
        A("s_sleep 2")
        A("s_sub_u32 s23, s23, 1")
        A("s_cmp_lg_u32 s23, 0")
        A("s_cbranch_scc1 L_qspin")
        A("L_qok:")
        self.stamp(2)
        QB = 20
        for s in range(4):
            A(f"ds_read_b128 v[{QB+4*s}:{QB+4*s+3}], v14 offset:{64*s}")
        A("s_waitcnt vmcnt(16)")
        self.stamp(3)
        KB = 36
        SB = 68
        def kread(T):
            for s in range(4):
                b = KB + 16*(T & 1) + 4*s
                A(f"ds_read_b128 v[{b}:{b+3}], v{10+s} offset:{T*4096}")
        if self.stamps: A("s_waitcnt lgkmcnt(0)")
        kread(0); kread(1)
        for T in range(4):
            A(f"s_waitcnt lgkmcnt({4 if T < 3 else 0})")
            for s in range(4):
                b = KB + 16*(T & 1) + 4*s
                c = "0" if s == 0 else f"v[{SB+4*T}:{SB+4*T+3}]"
                A(f"v_mfma_f32_16x16x32_bf16 v[{SB+4*T}:{SB+4*T+3}], v[{b}:{b+3}], v[{QB+4*s}:{QB+4*s+3}], {c}")
            if T + 2 < 4:
                kread(T + 2)
        A("s_nop 7")
        S = [f"v{SB+i}" for i in range(16)]
        A(f"v_max3_f32 v84, {S[0]}, {S[1]}, {S[2]}")
        for i in range(3, 15, 2):
            A(f"v_max3_f32 v84, v84, {S[i]}, {S[i+1]}")
        A(f"v_max_f32 v84, v84, {S[15]}")
        for op in ("v_permlane32_swap_b32", "v_permlane16_swap_b32"):
            A("v_mov_b32 v85, v84"); A("s_nop 1")
            A(f"{op} v84, v85"); A("s_nop 1")
            A("v_max_f32 v84, v84, v85")
        c = math.log2(math.e) / math.sqrt(128.0)
        A(f"s_mov_b32 s34, {f2u(c):#x}")
        A("v_mul_f32 v84, s34, v84")
        for i in range(16):
            A(f"v_fma_f32 {S[i]}, {S[i]}, s34, -v84")
        for i in range(16):
            A(f"v_exp_f32 {S[i]}, {S[i]}")
        A("s_nop 0")
        A(f"v_add_f32 v86, {S[0]}, {S[1]}"); A(f"v_add_f32 v87, {S[2]}, {S[3]}")
        for i in range(4, 16, 2):
            A(f"v_add_f32 v86, v86, {S[i]}"); A(f"v_add_f32 v87, v87, {S[i+1]}")
        A("v_add_f32 v86, v86, v87")
        for op in ("v_permlane32_swap_b32", "v_permlane16_swap_b32"):
            A("v_mov_b32 v85, v86"); A("s_nop 1")
            A(f"{op} v86, v85"); A("s_nop 1")
            A("v_add_f32 v86, v86, v85")
        A("ds_write_b32 v15, v84")
        A(f"ds_write_b32 v15, v86 offset:{STL-STM}")
        XB = 36
        for i in range(16):
            A(f"v_cvt_pk_bf16_f32 {S[i]}, {S[i]}, {S[i]}")
        for i in range(16):
            A(f"v_and_b32 v{XB+2*i}, {S[i]}, v16"); A(f"v_and_b32 v{XB+2*i+1}, {S[i]}, v17")
        A("s_waitcnt lgkmcnt(0)")
        A("s_mov_b64 exec, 1")
        A("v_mov_b32 v19, 1")
        A(f"ds_add_u32 v18, v19 offset:{CNTS-FLAGQ}")
        A("s_mov_b64 exec, -1")
        self.stamp(4)
        AB = [68, 72, 76, 80, 20, 24, 28, 32]
        A("s_cmp_ge_u32 s3, 4")
        A("s_cbranch_scc1 L_noa")
        A("v_lshrrev_b32 v9, 2, v2"); A("v_lshl_add_u32 v9, v1, 3, v9"); A("v_lshlrev_b32 v9, 7, v9")
        A("v_and_b32 v19, 3, v2"); A("v_lshl_add_u32 v9, v19, 3, v9")
        A("s_lshr_b32 s23, s3, 1"); A("s_lshl_b32 s23, s23, 6"); A(f"s_add_u32 s23, s23, {WB}")
        A("v_add_u32 v9, s23, v9")
        for nt in range(2):
            for s in range(4):
                b = AB[4*nt + s]
                for hh in range(2):
                    A(f"ds_read_b64_tr_b16 v[{b+2*hh}:{b+2*hh+1}], v9 offset:{s*4096 + hh*512 + nt*32}")
        A("L_noa:")
        for t in range(16):
            A(f"s_waitcnt vmcnt({15-t})")
            c1 = "0" if t == 0 else "v[88:91]"
            c2 = "0" if t == 0 else "v[92:95]"
            A(f"v_mfma_f32_16x16x16_bf16 v[88:91], v[{XB+2*t}:{XB+2*t+1}], v[{VB+4*t}:{VB+4*t+1}], {c1}")
            A(f"v_mfma_f32_16x16x16_bf16 v[92:95], v[{XB+2*t}:{XB+2*t+1}], v[{VB+4*t+2}:{VB+4*t+3}], {c2}")
        self.stamp(5)
        A("v_add_u32 v9, s55, v8")
        A("s_nop 6")
        A("ds_write_b128 v9, v[88:91]")
        A("ds_write_b128 v9, v[92:95] offset:1024")
        A("s_waitcnt lgkmcnt(0)")
        A("s_barrier")
        self.stamp(6)
        A("s_cmp_lt_u32 s3, 4")
        A("s_cbranch_scc1 L_oproj")
        A("s_cmp_ge_u32 s3, 6")
        A("s_cbranch_scc1 L_end")
        A("s_and_b32 s23, s3, 1")
        A("s_lshl_b32 s33, s23, 10")
        A("v_add_u32 v9, s33, v8")
        A("v_add_u32 v10, 0x10000, v9")
        A("v_lshlrev_b32 v11, 5, v1"); A(f"v_add_u32 v11, {FAC}, v11")
        A("ds_read_b128 v[20:23], v11"); A("ds_read_b128 v[24:27], v11 offset:16")
        for w in range(8):
            A(f"ds_read_b128 v[{36+4*w}:{39+4*w}], v{9 if w < 4 else 10} offset:{(w&3)*16384}")
        A("v_lshlrev_b32 v12, 14, v1")
        A("v_lshrrev_b32 v13, 2, v2"); A("v_lshl_add_u32 v12, v13, 11, v12")
        A("v_and_b32 v13, 3, v2"); A("v_lshl_add_u32 v12, v13, 4, v12")
        A("s_lshl_b32 s35, s22, 16")
        A("s_lshr_b32 s36, s21, 4"); A("s_lshl_b32 s36, s36, 13"); A("s_add_u32 s35, s35, s36")
        A("s_and_b32 s36, s21, 15"); A("s_lshl_b32 s36, s36, 6"); A("s_add_u32 s35, s35, s36")
        A("s_add_u32 s35, s35, s33"); A(f"s_add_u32 s35, s35, {O_OFF}")
        A("v_mov_b32 v68, s56"); A("v_mov_b32 v69, s57"); A("v_mov_b32 v72, s56"); A("v_mov_b32 v73, s57")
        A("s_waitcnt lgkmcnt(7)")
        for e in range(4): A(f"v_mul_f32 v{84+e}, v20, v{36+e}")
        for w in range(1, 8):
            A(f"s_waitcnt lgkmcnt({7-w})")
            for e in range(4): A(f"v_fmac_f32 v{84+e}, v{20+w}, v{36+4*w+e}")
        A("v_cvt_pk_bf16_f32 v70, v84, v85"); A("v_cvt_pk_bf16_f32 v71, v86, v87")
        A("s_cmp_eq_u32 s23, 0")
        A("s_cbranch_scc0 L_storeL")
        A("buffer_store_dwordx4 v[68:71], v12, s[44:47], s35 offen sc1")
        self.stamp(7)
        self.stamp_flush(1, 7, 16)
        A("s_endpgm")
        A("L_storeL:")
        A("buffer_store_dwordx4 v[70:73], v12, s[44:47], s35 offen sc1")
        A("s_endpgm")
        A("L_oproj:")
        A("s_lshl_b32 s35, s52, 2"); A("s_add_u32 s35, s35, s53")
        A("s_and_b32 s36, s3, 1")
        A("s_lshl_b32 s37, s35, 14"); A("s_lshl_b32 s38, s36, 13"); A("s_add_u32 s37, s37, s38"); A(f"s_add_u32 s37, s37, {O_OFF}")
        A("s_add_u32 s38, s37, 4096")
        A("v_lshlrev_b32 v9, 6, v2"); A("v_lshl_add_u32 v9, v1, 4, v9")
        A("v_lshlrev_b32 v10, 16, v2"); A("v_lshl_add_u32 v10, v1, 4, v10")
        A("s_lshl_b32 s39, s36, 20"); A("s_lshl_b32 s40, s54, 13"); A("s_add_u32 s39, s39, s40")
        A("s_lshl_b32 s40, s35, 8"); A("s_add_u32 s39, s39, s40")
        A("s_lshr_b32 s40, s3, 1"); A("s_lshl_b32 s40, s40, 7"); A("s_add_u32 s39, s39, s40"); A(f"s_add_u32 s39, s39, {OP_OFF}")
        A(f"s_mov_b32 s23, {self.spin}")
        OB = 96
        A("L_ospin:")
        for s in range(4):
            for ul in range(2):
                b = OB + 8*s + 4*ul
                so = "s37" if s < 2 else "s38"
                A(f"buffer_load_dwordx4 v[{b}:{b+3}], v9, s[44:47], {so} offen offset:{(s&1)*2048 + ul*1024} sc1")
        A("s_waitcnt vmcnt(0)")
        for s in range(4):
            b = OB + 8*s
            A(f"v_cmpx_eq_u64 vcc, s[56:57], v[{b}:{b+1}]")
            A(f"v_cmpx_eq_u64 vcc, s[56:57], v[{b+6}:{b+7}]")
        A("s_cmp_eq_u64 exec, -1")
        A("s_mov_b64 exec, -1")
        A("s_cbranch_scc1 L_ook")
        A("s_sub_u32 s23, s23, 1")
        A("s_cmp_lg_u32 s23, 0")
        A("s_cbranch_scc1 L_ospin")
        A("L_ook:")
        self.stamp(7)
        A("s_nop 3")
        for s in range(4):
            b = OB + 8*s + 2
            for nt in range(2):
                a = AB[4*nt + s]
                d = 36 + 4*nt
                c = "0" if s == 0 else f"v[{d}:{d+3}]"
                A(f"v_mfma_f32_16x16x32_bf16 v[{d}:{d+3}], v[{a}:{a+3}], v[{b}:{b+3}], {c}")
        A("s_nop 7")
        for nt in range(2):
            d = 36 + 4*nt
            for e in range(4):
                A(f"v_mov_b32_sdwa v{d+e}, s56 dst_sel:BYTE_0 dst_unused:UNUSED_PRESERVE src0_sel:BYTE_{e}")
            A("s_nop 0")
            A(f"buffer_store_dwordx4 v[{d}:{d+3}], v10, s[44:47], s39 offen offset:{nt*64} sc1")
        self.stamp(8)
        if self.stamps:
            A("s_cmp_lg_u32 s3, 0")
            A("s_cbranch_scc1 L_end")
            self.stamp_flush(0, 9, 0)
        A("s_endpgm")

    def helper(self):
        A = self.A; wp = self.wpol
        A("s_setprio 3")
        A(f"v_mov_b32 v18, {FLAGQ}")
        A("v_mov_b32 v20, 0"); A("v_mov_b32 v21, 0")
        A("ds_write_b64 v18, v[20:21]")
        A("v_lshrrev_b32 v3, 3, v0"); A("v_and_b32 v4, 7, v0"); A("v_lshlrev_b32 v4, 4, v4")
        A("v_lshl_add_u32 v5, v3, 13, v4")
        A("v_lshl_add_u32 v6, v3, 10, v4")
        A("v_lshlrev_b32 v7, 10, v2"); A("v_lshl_add_u32 v7, v1, 4, v7")
        A("s_lshl_b32 s23, s52, 3"); A("s_add_u32 s23, s23, s54")
        A("s_lshl_b32 s24, s53, 20"); A("s_lshl_b32 s25, s23, 7"); A("s_add_u32 s24, s24, s25")
        A("s_lshl_b32 s26, s53, 8"); A("s_add_u32 s27, s26, 16384")
        A("s_waitcnt lgkmcnt(0)")
        self.srd(32, 10, 11, 4194304)
        self.srd(36, 4, 5, 32768)
        A("s_load_dword s20, s[18:19], 0")
        for t in range(16):
            A(f"s_mov_b32 m0, {WB + t*1024}")
            A(f"s_add_u32 s25, s24, {t*65536}")
            A(f"buffer_load_dwordx4 v5, s[32:35], s25 offen {wp} lds")
        XB = 24
        for bt in range(2):
            for s in range(4):
                b = XB + 16*bt + 4*s
                A(f"buffer_load_dwordx4 v[{b}:{b+3}], v7, s[36:39], s{26+bt} offen offset:{s*64}")
        A("s_barrier")
        self.srd(40, 12, 13, 4194304)
        self.srd(44, 18, 19, WS_SIZE)
        self.srd(48, 14, 15, 32768)
        A("v_lshrrev_b32 v9, 2, v2"); A("v_lshl_add_u32 v9, v1, 3, v9"); A("v_lshlrev_b32 v9, 7, v9")
        A("v_and_b32 v19, 3, v2"); A("v_lshl_add_u32 v9, v19, 3, v9")
        A(f"v_add_u32 v9, {WB}, v9")
        A("v_lshlrev_b32 v10, 16, v2"); A("v_lshl_add_u32 v10, v1, 4, v10")
        A("s_lshl_b32 s28, s52, 13"); A("s_lshl_b32 s29, s53, 11"); A("s_add_u32 s28, s28, s29")
        A("s_lshl_b32 s29, s54, 8"); A("s_add_u32 s28, s28, s29"); A(f"s_add_u32 s28, s28, {QP_OFF}")
        A("s_add_u32 s29, s28, 0x100000")
        A("v_lshlrev_b32 v8, 4, v0")
        A("s_waitcnt lgkmcnt(0)")
        self.epoch_tag()
        A("s_waitcnt vmcnt(0)")
        self.stamp(1)
        AB = 56
        for nt in range(4):
            for s in range(4):
                b = AB + 16*nt + 4*s
                for hh in range(2):
                    A(f"ds_read_b64_tr_b16 v[{b+2*hh}:{b+2*hh+1}], v9 offset:{s*4096 + hh*512 + nt*32}")
            if nt == 0 or nt == 2:
                pass
        DB = 120
        A("s_waitcnt lgkmcnt(0)")
        A("s_lshl_b32 s24, s52, 2"); A("s_add_u32 s24, s24, s53"); A("s_lshl_b32 s24, s24, 17")
        A("s_lshl_b32 s25, s54, 7"); A("s_add_u32 s24, s24, s25")
        for nt in range(4):
            for s in range(4):
                for bt in range(2):
                    a = AB + 16*nt + 4*s; b = XB + 16*bt + 4*s; d = DB + 8*nt + 4*bt
                    c = "0" if s == 0 else f"v[{d}:{d+3}]"
                    A(f"v_mfma_f32_16x16x32_bf16 v[{d}:{d+3}], v[{a}:{a+3}], v[{b}:{b+3}], {c}")
        A("s_nop 7")
        for nt in range(4):
            for bt in range(2):
                d = DB + 8*nt + 4*bt
                for e in range(4):
                    A(f"v_mov_b32_sdwa v{d+e}, s56 dst_sel:BYTE_0 dst_unused:UNUSED_PRESERVE src0_sel:BYTE_{e}")
                A("s_nop 0")
                A(f"buffer_store_dwordx4 v[{d}:{d+3}], v10, s[44:47], s{28+bt} offen offset:{nt*64} sc1")
        self.stamp(2)
        for t in range(16):
            A(f"s_mov_b32 m0, {WB + t*1024}")
            A(f"s_add_u32 s25, s24, {t*8192}")
            A(f"buffer_load_dwordx4 v6, s[40:43], s25 offen {wp} lds")
        A("s_lshl_b32 s28, s21, 16"); A("s_lshl_b32 s29, s22, 13"); A("s_add_u32 s28, s28, s29"); A(f"s_add_u32 s28, s28, {QP_OFF}")
        A("s_add_u32 s29, s28, 4096")
        PB = 24
        def poll(label, cnt_reg):
            A(f"s_mov_b32 s23, {self.spin}")
            A(f"{label}:")
            for t in range(8):
                A(f"buffer_load_dwordx4 v[{PB+4*t}:{PB+4*t+3}], v8, s[44:47], s{28 + (t>>2)} offen offset:{(t&3)*1024} sc1")
            A("s_waitcnt vmcnt(0)")
            for t in range(8):
                for e in range(4):
                    A(f"v_cmpx_eq_u32_sdwa vcc, v{PB+4*t+e}, s56 src0_sel:BYTE_0 src1_sel:BYTE_{e}")
            A("s_cmp_eq_u64 exec, -1")
            A("s_mov_b64 exec, -1")
            A(f"s_cbranch_scc1 {label}_ok")
            A("s_sub_u32 s23, s23, 1")
            A("s_cmp_lg_u32 s23, 0")
            A(f"s_cbranch_scc1 {label}")
            A(f"{label}_ok:")
        poll("L_qpoll", 23)
        self.stamp(3)
        for half in range(2):
            for e in range(4):
                r = [PB + 4*(2*kq + half) + e for kq in range(4)]
                A(f"v_add_f32 v{r[0]}, v{r[0]}, v{r[1]}"); A(f"v_add_f32 v{r[2]}, v{r[2]}, v{r[3]}"); A(f"v_add_f32 v{r[0]}, v{r[0]}, v{r[2]}")
        A("v_lshlrev_b32 v11, 3, v0"); A(f"v_add_u32 v11, {QL}, v11")
        for half in range(2):
            b = PB + 4*half
            A(f"v_cvt_pk_bf16_f32 v{60+2*half}, v{b}, v{b+1}"); A(f"v_cvt_pk_bf16_f32 v{61+2*half}, v{b+2}, v{b+3}")
            A(f"ds_write_b64 v11, v[{60+2*half}:{61+2*half}] offset:{half*512}")
        A("v_mov_b32 v19, 1")
        A("s_waitcnt lgkmcnt(0)")
        A("ds_write_b32 v18, v19")
        A(f"s_mov_b32 s23, {self.spin}")
        A("L_sspin:")
        A(f"ds_read_b32 v19, v18 offset:{CNTS-FLAGQ}")
        A("s_waitcnt lgkmcnt(0)")
        A("v_readfirstlane_b32 s33, v19")
        A("s_cmp_eq_u32 s33, 8")
        A("s_cbranch_scc1 L_sok")
        A("s_sleep 1")
        A("s_sub_u32 s23, s23, 1")
        A("s_cmp_lg_u32 s23, 0")
        A("s_cbranch_scc1 L_sspin")
        A("L_sok:")
        self.stamp(4)
        A("v_and_b32 v11, 31, v0"); A("v_lshlrev_b32 v11, 2, v11"); A(f"v_add_u32 v11, {STM}, v11")
        A("ds_read_b32 v20, v11"); A(f"ds_read_b32 v21, v11 offset:{STL-STM}")
        A("s_waitcnt lgkmcnt(0)")
        dpps = ["quad_perm:[1,0,3,2]", "quad_perm:[2,3,0,1]", "row_half_mirror"]
        A("v_mov_b32 v22, v20")
        for d in dpps:
            A("s_nop 1")
            A(f"v_max_f32_dpp v22, v22, v22 {d} row_mask:0xf bank_mask:0xf")
        A("v_sub_f32 v20, v20, v22")
        A("v_exp_f32 v20, v20")
        A("s_nop 0")
        A("v_mul_f32 v21, v20, v21")
        for d in dpps:
            A("s_nop 1")
            A(f"v_add_f32_dpp v21, v21, v21 {d} row_mask:0xf bank_mask:0xf")
        A("v_rcp_f32 v21, v21")
        A("s_nop 0")
        A("v_mul_f32 v20, v20, v21")
        A(f"ds_write_b32 v11, v20 offset:{FAC-STM}")
        A("s_lshl_b32 s28, s2, 13"); A(f"s_add_u32 s28, s28, {OP_OFF}"); A("s_add_u32 s29, s28, 4096")
        A("s_waitcnt lgkmcnt(0)")
        A("s_barrier")
        self.stamp(5)
        poll("L_ppoll", 23)
        self.stamp(6)
        for e in range(4):
            r = [PB + 4*t + e for t in range(8)]
            A(f"v_add_f32 v{r[0]}, v{r[0]}, v{r[1]}"); A(f"v_add_f32 v{r[2]}, v{r[2]}, v{r[3]}")
            A(f"v_add_f32 v{r[4]}, v{r[4]}, v{r[5]}"); A(f"v_add_f32 v{r[6]}, v{r[6]}, v{r[7]}")
        for e in range(4):
            r = [PB + 4*t + e for t in range(8)]
            A(f"v_add_f32 v{r[0]}, v{r[0]}, v{r[2]}"); A(f"v_add_f32 v{r[4]}, v{r[4]}, v{r[6]}")
        for e in range(4):
            A(f"v_add_f32 v{PB+e}, v{PB+e}, v{PB+16+e}")
        for op in ("v_permlane32_swap_b32", "v_permlane16_swap_b32"):
            for e in range(4): A(f"v_mov_b32 v{60+e}, v{PB+e}")
            A("s_nop 1")
            for e in range(4): A(f"{op} v{PB+e}, v{60+e}")
            A("s_nop 1")
            for e in range(4): A(f"v_add_f32 v{PB+e}, v{PB+e}, v{60+e}")
        A(f"v_cvt_pk_bf16_f32 v60, v{PB}, v{PB+1}"); A(f"v_cvt_pk_bf16_f32 v61, v{PB+2}, v{PB+3}")
        A("v_lshlrev_b32 v11, 3, v0")
        A("s_lshl_b32 s28, s2, 7")
        A("s_mov_b64 exec, 0xffff")
        A("buffer_store_dwordx2 v[60:61], v11, s[48:51], s28 offen")
        A("s_cmp_lg_u32 s2, 0")
        A("s_cbranch_scc1 L_noepoch")
        A("s_mov_b64 exec, 1")
        A("v_mov_b32 v62, s56"); A("v_mov_b32 v63, 0")
        A("buffer_store_dword v62, v63, s[44:47], 0 offen")
        A("L_noepoch:")
        A("s_mov_b64 exec, -1")
        self.stamp(7)
        self.stamp_flush(1, 7, 9)

    def text(self):
        self.build()
        hdr = open("standalone__sliding_block_cached__sampling.s.ref").read().split("; Override launch")[0] if False else ""
        body = "\n".join(("    " + x) if not x.endswith(":") else x for x in self.L)
        return f"""; Fused q-proj + sliding-window GQA decode attention + o-proj (generated by gen1.py)
; @launch grid=(256,1,1) block=(576,1,1) lds={LDS_TOTAL}
.amdgcn_target "amdgcn-amd-amdhsa--gfx950"
.text
.globl {NAME}
.p2align 8
.type {NAME},@function
{NAME}:
{body}
.section .rodata,"a"
.p2align 6
.amdhsa_kernel {NAME}
  .amdhsa_next_free_vgpr 160
  .amdhsa_next_free_sgpr 96
  .amdhsa_accum_offset 160
  .amdhsa_group_segment_fixed_size 0
  .amdhsa_kernarg_size 64
  .amdhsa_user_sgpr_count 2
  .amdhsa_user_sgpr_kernarg_segment_ptr 1
  .amdhsa_system_sgpr_workgroup_id_x 1
.end_amdhsa_kernel
"""

if __name__ == "__main__":
    open("k1.s", "w").write(Gen().text())
    open("k1_st.s", "w").write(Gen(stamps=True).text())
    open("k1_dbg.s", "w").write(Gen(dbgstamps=[0,1,2,4,5,6,7,8,9,10,11,12,14,15,22]).text())
    open("k1_nont.s", "w").write(Gen(kvpol="", wpol="").text())
```

```python
import sys
NAME = "standalone__sliding_block_cached__sampling_kernel"

def header(grid, block, lds):
    return f"""; @launch grid=({grid},1,1) block=({block},1,1) lds={lds}
.amdgcn_target "amdgcn-amd-amdhsa--gfx950"
.text
.globl {NAME}
.p2align 8
.type {NAME},@function
{NAME}:
"""
def footer(vgpr, accum):
    return f"""
s_endpgm
.section .rodata,"a"
.p2align 6
.amdhsa_kernel {NAME}
  .amdhsa_next_free_vgpr {vgpr}
  .amdhsa_next_free_sgpr 96
  .amdhsa_accum_offset {accum}
  .amdhsa_group_segment_fixed_size 0
  .amdhsa_kernarg_size 64
  .amdhsa_user_sgpr_count 2
  .amdhsa_user_sgpr_kernarg_segment_ptr 1
  .amdhsa_system_sgpr_workgroup_id_x 1
.end_amdhsa_kernel
"""

def gen(waves=4, pattern="contig", policy="", dest="vgpr", rot=0, split=1, mapping="bmajor", empty=False, vpat=None, wint=False, kvint=False, xmask=None, wo=None, wopol=''):
    grid = 256 * split
    L = []
    A = L.append
    A("s_memrealtime s[40:41]")
    A(f"s_cmp_ge_u32 s2, {grid}")
    A("s_cbranch_scc1 L_end")
    A("s_load_dwordx4 s[4:7], s[0:1], 8")
    A("s_load_dwordx2 s[8:9], s[0:1], 56")
    A("v_lshrrev_b32 v1, 6, v0")
    A("v_and_b32 v2, 63, v0")
    A("s_nop 0")
    A("v_readfirstlane_b32 s20, v1")
    if split > 1:
        import math
        sh = int(math.log2(split))
        A("s_and_b32 s21, s2, 255")
        A("s_lshr_b32 s22, s2, 8")
    else:
        A("s_mov_b32 s21, s2")
        A("s_mov_b32 s22, 0")
    if mapping == "hmajor":
        A("s_and_b32 s23, s21, 31")
        A("s_lshl_b32 s23, s23, 3")
        A("s_lshr_b32 s21, s21, 5")
        A("s_add_u32 s21, s21, s23")
    if mapping == "xblock":
        A("s_and_b32 s23, s21, 7")
        A("s_lshl_b32 s23, s23, 5")
        A("s_lshr_b32 s21, s21, 3")
        A("s_add_u32 s21, s21, s23")
    if mapping == "x4":
        A("s_and_b32 s23, s21, 7")
        A("s_lshl_b32 s23, s23, 2")
        A("s_lshr_b32 s29, s21, 3")
        A("s_and_b32 s29, s29, 3")
        A("s_add_u32 s23, s23, s29")
        A("s_and_b32 s21, s21, 0xe0")
        A("s_add_u32 s21, s21, s23")
    if mapping == "x2":
        A("s_and_b32 s23, s21, 7")
        A("s_lshl_b32 s23, s23, 1")
        A("s_lshr_b32 s29, s21, 3")
        A("s_and_b32 s29, s29, 1")
        A("s_add_u32 s23, s23, s29")
        A("s_and_b32 s21, s21, 0xf0")
        A("s_add_u32 s21, s21, s23")
    per_wg = 131072 // split
    per_wave = per_wg // waves
    nload = per_wave // 1024
    A("s_lshr_b32 s25, s21, 13")
    A("s_lshl_b32 s24, s21, 19")
    A("s_add_u32 s24, s24, 393216")
    A("s_addc_u32 s25, s25, 0")
    A("s_waitcnt lgkmcnt(0)")
    A("s_add_u32 s12, s4, s24"); A("s_addc_u32 s13, s5, s25"); A("s_and_b32 s13, s13, 0xffff"); A("s_mov_b32 s14, 131072"); A("s_mov_b32 s15, 0x20000")
    A("s_add_u32 s16, s6, s24"); A("s_addc_u32 s17, s7, s25"); A("s_and_b32 s17, s17, 0xffff"); A("s_mov_b32 s18, 131072"); A("s_mov_b32 s19, 0x20000")
    A("v_lshlrev_b32 v3, 4, v2")
    A("v_and_b32 v4, 15, v2"); A("v_lshlrev_b32 v4, 8, v4"); A("v_lshrrev_b32 v5, 4, v2"); A("v_lshlrev_b32 v5, 4, v5"); A("v_add_u32 v4, v4, v5")
    step = 4096 * waves if wint else 4096
    A(f"s_mul_i32 s26, s20, {4096 if wint else per_wave}")
    A(f"s_mul_i32 s27, s22, {per_wg}")
    A("s_add_u32 s26, s26, s27")
    if rot:
        A(f"s_mul_i32 s27, s21, {rot}")
        A("s_add_u32 s26, s26, s27")
    A("s_and_b32 s26, s26, 131071")
    if dest == "lds":
        A(f"s_mul_i32 s28, s20, {min(2*per_wave, 160*1024//waves)}")
    reg = 8
    ldsoff = 0
    if xmask is not None:
        A("s_and_b32 s31, s2, 7")
        A("s_lshl_b32 s31, 1, s31")
        A(f"s_and_b32 s31, s31, {xmask}")
        A("s_cbranch_scc0 L_skip")
    wol = []
    if wo:
        A("s_load_dwordx2 s[32:33], s[0:1], 32")
        A("s_and_b32 s36, s2, 7"); A("s_lshl_b32 s36, s36, 2"); A("s_lshr_b32 s37, s2, 3"); A("s_and_b32 s37, s37, 3"); A("s_add_u32 s36, s36, s37")
        A("s_lshl_b32 s36, s36, 5")
        A(f"s_mul_i32 s37, s20, {4096//waves*1024}")
        A("s_add_u32 s36, s36, s37")
        A("s_waitcnt lgkmcnt(0)")
        A("s_and_b32 s33, s33, 0xffff"); A("s_mov_b32 s34, 4194304"); A("s_mov_b32 s35, 0x20000")
        A("v_lshrrev_b32 v6, 1, v2"); A("v_lshlrev_b32 v6, 10, v6"); A("v_and_b32 v7, 1, v2"); A("v_lshlrev_b32 v7, 4, v7"); A("v_add_u32 v6, v6, v7")
        if wo.endswith("c"):
            A("s_and_b32 s36, s2, 7"); A("s_lshl_b32 s36, s36, 2"); A("s_lshr_b32 s37, s2, 3"); A("s_and_b32 s37, s37, 3"); A("s_add_u32 s36, s36, s37")
            A("s_lshl_b32 s36, s36, 17")
            A(f"s_mul_i32 s37, s20, {131072//waves}")
            A("s_add_u32 s36, s36, s37")
            A("v_mov_b32 v6, v3")
        for j in range(128 // waves):
            stepb = 1024 if wo.endswith("c") else 32768
            wol.append((f"s_add_u32 s38, s36, {j*stepb}", "buffer_load_dwordx4 %s, v6, s[32:35], s38 offen " + wopol))
    def emit_wo(n):
        nonlocal reg
        for _ in range(n):
            if not wol: return
            a, b = wol.pop(0)
            A(a)
            r = f"v[{reg}:{reg+3}]" if reg < 256 else f"a[{reg-256}:{reg-256+3}]"
            A(b % r)
            reg += 4
    if wo and wo.startswith("first"): emit_wo(1000)
    if not empty:
      ng = nload // 4 if nload >= 4 else 1
      if kvint:
          seq = [(w, g) for g in range(ng) for w in ("k", "v")]
      else:
          seq = [(w, g) for w in ("k", "v") for g in range(ng)]
      for which, g in seq:
            srd = "s[12:15]" if which == "k" else "s[16:19]"
            pat = pattern if which == "k" or vpat is None else vpat
            A(f"s_add_u32 s30, s26, {g*step}")
            A("s_and_b32 s30, s30, 131071")
            for j in range(min(4, nload)):
                if pat == "contig":
                    va, off = "v3", j * 1024
                else:
                    va, off = "v4", j * 64
                if dest == "vgpr":
                    if reg < 256:
                        r = f"v[{reg}:{reg+3}]"
                    else:
                        r = f"a[{reg-256}:{reg-256+3}]"
                    A(f"buffer_load_dwordx4 {r}, {va}, {srd}, s30 offen offset:{off} {policy}")
                    reg += 4
                else:
                    lo = ldsoff % (160 * 1024 // waves // 4096 * 4096)
                    if j == 0:
                        A(f"s_add_u32 m0, s28, {lo - off}")
                        A("s_nop 0")
                    A(f"buffer_load_dwordx4 {va}, {srd}, s30 offen offset:{off} {policy} lds")
                    ldsoff += 1024
            if wo and wo.startswith("inter"): emit_wo(2)
            if wo and wo.startswith("mid") and which == "k" and g == ng - 1: emit_wo(1000)
    emit_wo(1000)
    A("L_skip:")
    A("s_memrealtime s[42:43]")
    A("s_waitcnt vmcnt(0)")
    A("s_barrier")
    A("s_memrealtime s[44:45]")
    A("s_cmp_lg_u32 s20, 0")
    A("s_cbranch_scc1 L_end")
    A("s_waitcnt lgkmcnt(0)")
    A("s_add_u32 s8, s8, 0x10000000"); A("s_addc_u32 s9, s9, 0")
    A("s_lshl_b32 s3, s2, 8")
    A("v_mov_b32 v6, s3")
    A("v_mov_b32 v0, s40"); A("v_mov_b32 v1, s41"); A("v_mov_b32 v2, s42"); A("v_mov_b32 v3, s43"); A("v_mov_b32 v4, s44"); A("v_mov_b32 v5, s45")
    A("s_mov_b64 exec, 1")
    A("global_store_dwordx2 v6, v[0:1], s[8:9]")
    A("global_store_dwordx2 v6, v[2:3], s[8:9] offset:8")
    A("global_store_dwordx2 v6, v[4:5], s[8:9] offset:16")
    A("L_end:")
    nreg = max(reg, 8)
    if nreg > 256:
        vg, acc = nreg, 256
    else:
        vg, acc = nreg, (nreg + 3) // 4 * 4
    lds = 0 if dest == "vgpr" else 160 * 1024
    return header(grid, waves * 64, lds) + "\n".join("    " + x if not x.endswith(":") else x for x in L) + footer(vg, acc)

if __name__ == "__main__":
    V = {}
    V["base"] = dict(waves=8, policy="nt", mapping="hmajor")
    V["base_nont"] = dict(waves=8, policy="", mapping="hmajor")
    V["bmajor"] = dict(waves=8, policy="nt", mapping="bmajor")
    V["bmajor_nont"] = dict(waves=8, policy="", mapping="bmajor")
    for k, kw in V.items():
        open(f"st_{k}.s", "w").write(gen(**kw))
    print(" ".join(f"st_{k}.s" for k in V))
```

```python
from gen_stream import header, footer
def gen(n, pol, fin):
    L = []; A = L.append
    A("s_memrealtime s[64:65]")
    A("s_load_dwordx2 s[8:9], s[0:1], 56"); A("s_load_dwordx2 s[10:11], s[0:1], 40")
    A("v_lshlrev_b32 v1, 4, v0"); A("s_lshl_b32 s3, s2, 13"); A("v_add_u32 v1, s3, v1"); A("v_mov_b32 v2, v1")
    A("v_lshlrev_b32 v3, 1, v0"); A("s_lshl_b32 s3, s2, 7"); A("v_add_u32 v3, s3, v3")
    A("s_waitcnt lgkmcnt(0)")
    for t in range(8):
        A("global_load_dwordx4 v[4:7], v2, s[8:9] sc1"); A("v_add_u32 v2, 1024, v2")
    A("s_waitcnt vmcnt(0)")
    def wait(t, lab):
        A(f"{lab}:"); A("s_memrealtime s[42:43]"); A("s_waitcnt lgkmcnt(0)"); A("s_sub_u32 s41, s42, s64"); A(f"s_cmp_lt_u32 s41, {t}"); A(f"s_cbranch_scc1 {lab}")
    wait(960, "L_a")
    for t in range(n):
        A(f"global_store_dwordx4 v1, v[4:7], s[8:9] {pol}"); A("v_add_u32 v1, 1024, v1")
    wait(1000, "L_b")
    if fin is not None: A(f"global_store_short v3, v4, s[10:11] {fin}")
    return header(256, 64, 157184) + "\n".join("    " + x if not x.endswith(":") else x for x in L) + footer(16, 16)
V = {"none": (0, "", None), "fin_pl": (0, "", ""), "fin_sc1": (0, "", "sc1"), "fin_nt": (0, "", "nt"), "fin_sc01": (0, "", "sc0 sc1"),
     "d8pl_finpl": (8, "", ""), "d8pl_finsc1": (8, "", "sc1"), "d8nt_finpl": (8, "nt", ""), "d8sc0_finpl": (8, "sc0", ""), "d8sc1_finsc1": (8, "sc1", "sc1"), "d4pl_finpl": (4, "", ""), "d8nt_finsc1": (8, "nt", "sc1")}
for k, a in V.items():
    open(f"en_{k}.s", "w").write(gen(*a))
print(" ".join(f"en_{k}.s" for k in V))
```
